```python
import torch

def _softmax(x, axis=-1):
    return torch.softmax(x, dim=axis)
def _gelu(x):
    return torch.nn.functional.gelu(x, approximate="tanh")
def _silu(x):
    return torch.nn.functional.silu(x)
def _sigmoid(x):
    return torch.sigmoid(x)
def _layernorm(x, axis=-1, eps=1e-5):
    m = x.mean(dim=axis, keepdim=True)
    v = x.var(dim=axis, keepdim=True, unbiased=False)
    return (x - m) / torch.sqrt(v + eps)
def _scatter_add(tgt, idx, src, axis=0):
    return tgt.clone().index_add_(axis, idx, src)
def _segment_sum(src, seg, n):
    out = torch.zeros((n,) + src.shape[1:], dtype=src.dtype)
    return out.index_add_(0, seg, src)
def _pad(x, pw):
    flat = tuple(v for pair in reversed(pw) for v in pair)
    return torch.nn.functional.pad(x, flat)

kernel_name = 'concat_heads__gqa_block_cached__gqa_block_cached__near_ridge'

def setup_inputs():

    _w = (lambda a: (lambda t: t.to(torch.bfloat16) if t.is_floating_point() else t)(torch.as_tensor(a)))
    def _A_setup():
        B, Sq, D = 8, 80, 512
        Hq, Hkv, Sk, Dh = 32, 8, 512, 128
        assert Hq % Hkv == 0, (Hq, Hkv)
        return {
            "x": _w((lambda *s: torch.randn(*s, dtype=torch.bfloat16) * 0.8)(B, Sq, D)),
            "k_cache": _w((lambda *s: torch.randn(*s, dtype=torch.bfloat16) * 0.8)(B, Hkv, Sk, Dh)),
            "v_cache": _w((lambda *s: torch.randn(*s, dtype=torch.bfloat16) * 0.05)(B, Hkv, Sk, Dh)),
            "wq": _w((lambda *s: torch.randn(*s, dtype=torch.bfloat16) * 0.8)(D, Hq * Dh) * (D ** -0.5)),
            "wo": _w((lambda *s: torch.randn(*s, dtype=torch.bfloat16) * 0.05)(Hq * Dh, D) * ((Hq * Dh) ** -0.5)),
        }
    _A_in = _A_setup()

    def _B_setup():
        B, Sq, D = 8, 80, 512
        Hq, Hkv, Sk, Dh = 32, 8, 512, 128
        assert Hq % Hkv == 0, (Hq, Hkv)
        return {
            "x": _w((lambda *s: torch.randn(*s, dtype=torch.bfloat16) * 0.8)(B, Sq, D)),
            "k_cache": _w((lambda *s: torch.randn(*s, dtype=torch.bfloat16) * 0.8)(B, Hkv, Sk, Dh)),
            "v_cache": _w((lambda *s: torch.randn(*s, dtype=torch.bfloat16) * 0.05)(B, Hkv, Sk, Dh)),
            "wq": _w((lambda *s: torch.randn(*s, dtype=torch.bfloat16) * 0.8)(D, Hq * Dh) * (D ** -0.5)),
            "wo": _w((lambda *s: torch.randn(*s, dtype=torch.bfloat16) * 0.05)(Hq * Dh, D) * ((Hq * Dh) ** -0.5)),
        }
    _B_in = _B_setup()

    return {
        "A_x": _A_in["x"],
        "A_k_cache": _A_in["k_cache"],
        "A_v_cache": _A_in["v_cache"],
        "A_wq": _A_in["wq"],
        "A_wo": _A_in["wo"],
        "B_x": _B_in["x"],
        "B_k_cache": _B_in["k_cache"],
        "B_v_cache": _B_in["v_cache"],
        "B_wq": _B_in["wq"],
        "B_wo": _B_in["wo"],
    }

def reference(A_x, A_k_cache, A_v_cache, A_wq, A_wo, B_x, B_k_cache, B_v_cache, B_wq, B_wo):
    def _A_ref(x, k_cache, v_cache, wq, wo):
        B, Sq, D = x.shape
        Hq, Dh = 32, 128
        Hkv = k_cache.shape[1]
        rep = Hq // Hkv
        q = (lambda x, *d: x.permute(*d))((x @ wq).reshape(B, Sq, Hq, Dh), 0, 2, 1, 3)
        k = (lambda x, n, axis: torch.repeat_interleave(x, n, dim=axis))(k_cache, rep, axis=1)
        v = (lambda x, n, axis: torch.repeat_interleave(x, n, dim=axis))(v_cache, rep, axis=1)
        scores = torch.einsum("bhqd,bhkd->bhqk", q, k) * (Dh ** -0.5)
        p = _softmax(scores, axis=-1)
        o = torch.einsum("bhqk,bhkd->bhqd", p, v)
        return (lambda x, *d: x.permute(*d))(o, 0, 2, 1, 3).reshape(B, Sq, Hq * Dh) @ wo

    def _B_ref(x, k_cache, v_cache, wq, wo):
        B, Sq, D = x.shape
        Hq, Dh = 32, 128
        Hkv = k_cache.shape[1]
        rep = Hq // Hkv
        q = (lambda x, *d: x.permute(*d))((x @ wq).reshape(B, Sq, Hq, Dh), 0, 2, 1, 3)
        k = (lambda x, n, axis: torch.repeat_interleave(x, n, dim=axis))(k_cache, rep, axis=1)
        v = (lambda x, n, axis: torch.repeat_interleave(x, n, dim=axis))(v_cache, rep, axis=1)
        scores = torch.einsum("bhqd,bhkd->bhqk", q, k) * (Dh ** -0.5)
        p = _softmax(scores, axis=-1)
        o = torch.einsum("bhqk,bhkd->bhqd", p, v)
        return (lambda x, *d: x.permute(*d))(o, 0, 2, 1, 3).reshape(B, Sq, Hq * Dh) @ wo

    a = _A_ref(A_x, A_k_cache, A_v_cache, A_wq, A_wo)
    b = _B_ref(B_x, B_k_cache, B_v_cache, B_wq, B_wo)
    return torch.concatenate([a, b], axis=-1)
```

```python
import re

def R(cls, n, cnt=1):
    return [(cls, n + i) for i in range(cnt)]
def rs(cls, n, cnt=1):
    return f"{cls}{n}" if cnt == 1 else f"{cls}[{n}:{n+cnt-1}]"

class Reg:
    def __init__(self, cls, n, cnt=1):
        self.cls, self.n, self.cnt = cls, n, cnt
    def __str__(self): return rs(self.cls, self.n, self.cnt)
    def regs(self): return R(self.cls, self.n, self.cnt)
    def sub(self, off, cnt=1):
        assert off + cnt <= self.cnt
        return Reg(self.cls, self.n + off, cnt)
def V(n, c=1): return Reg('v', n, c)
def A(n, c=1): return Reg('a', n, c)
def S(n, c=1): return Reg('s', n, c)

class Ins:
    def __init__(self, text, kind, rd=(), wr=(), **meta):
        self.text, self.kind = text, kind
        self.rd = self._flat(rd); self.wr = self._flat(wr)
        self.meta = meta
    @staticmethod
    def _flat(l):
        out = []
        for x in l:
            if isinstance(x, Reg): out += x.regs()
            elif isinstance(x, tuple): out.append(x)
            elif x is None or isinstance(x, (int, str, float)): pass
            else: raise ValueError(x)
        return out
    def __repr__(self): return self.text

VALU_KINDS = ('valu', 'trans', 'perm', 'pk')
MEM_KINDS = ('dsr', 'dsw', 'dma', 'vld', 'vst')
SCALAR_KINDS = ('salu', 'wait', 'bar', 'nop', 'smem', 'branch')

def mfma(d, a, b, c, **m):
    cs = str(c)
    return Ins(f"v_mfma_f32_16x16x32_bf16 {d}, {a}, {b}, {cs}", 'mfma', rd=[a, b, c], wr=[d],
               A=a, B=b, C=c if isinstance(c, Reg) else None, D=d, **m)
def valu(op, d, *src, kind='valu', rmw=False, mods="", **m):
    rd = list(src) + ([d] if rmw else [])
    return Ins(f"{op} {d}, " + ", ".join(str(s) for s in src) + mods, kind, rd=rd, wr=[d], **m)
def vexp(d, s, **m): return valu("v_exp_f32", d, s, kind='trans', **m)
def cvtpk(d, s0, s1, **m): return valu("v_cvt_pk_bf16_f32", d, s0, s1, **m)
def swap16(a, b, **m): return Ins(f"v_permlane16_swap_b32 {a}, {b}", 'perm', rd=[a, b], wr=[a, b], **m)
def swap32(a, b, **m): return Ins(f"v_permlane32_swap_b32 {a}, {b}", 'perm', rd=[a, b], wr=[a, b], **m)
def salu(op, d, *src, **m):
    wr = [d] if isinstance(d, Reg) else ([('m0', 0)] if d == 'm0' else [])
    return Ins(f"{op} {d}" + "".join(f", {s}" for s in src), 'salu', rd=list(src), wr=wr, **m)
def dsr(op, d, areg, off, **m):
    assert 0 <= off <= 65535, off
    return Ins(f"{op} {d}, {areg} offset:{off}", "dsr", rd=[areg], wr=[d], **m)
def dsw(op, areg, s, off, **m):
    assert 0 <= off <= 65535, off
    return Ins(f"{op} {areg}, {s} offset:{off}", "dsw", rd=[areg, s], **m)
def dma(voff, srd, soff, off, flags="", **m):
    assert 0 <= off <= 4095
    return Ins(f"buffer_load_dwordx4 {voff}, {srd}, {soff} offen offset:{off} lds{flags}", 'dma',
               rd=[voff, srd, soff, ('m0', 0)], **m)
def vld(op, d, voff, srd, soff, off, flags="", **m):
    assert 0 <= off <= 4095
    return Ins(f"{op} {d}, {voff}, {srd}, {soff} offen offset:{off}{flags}", 'vld', rd=[voff, srd, soff], wr=[d], **m)
def vst(op, s, voff, srd, soff, off, flags="", **m):
    assert 0 <= off <= 4095
    return Ins(f"{op} {s}, {voff}, {srd}, {soff} offen offset:{off}{flags}", 'vst', rd=[s, voff, srd, soff], data=s, **m)
def waitvm(tag): return Ins(f"; waitvm {tag}", 'wait', vmtag=tag)
def waitlg(tag): return Ins(f"; waitlg {tag}", 'wait', lgtag=tag)
def wait(vm=None, lg=None): return Ins("; wait", 'wait', vm=vm, lg=lg)
def bar(name=""): return Ins("s_barrier", 'bar', name=name)
def nop(n=0): return Ins(f"s_nop {n}", 'nop', n=n)
def raw(text, kind='salu', **kw): return Ins(text, kind, **kw)
def label(name): return Ins(f"{name}:", 'label')
def comment(t): return Ins(f"; {t}", 'label')

def resolve_waits(prog, verbose=False):
    out = []
    lg = []
    vm = []
    auto = 0
    def apply(w):
        nonlocal lg, vm
        if w.meta.get('lg') is not None:
            n = w.meta['lg']; lg = lg[len(lg) - n:] if n < len(lg) else lg
            if n == 0: lg = []
        if w.meta.get('vm') is not None:
            n = w.meta['vm']; vm = vm[len(vm) - n:] if n < len(vm) else vm
            if n == 0: vm = []
    def count_after(seq, pos, kinds, op):
        n = 0
        for x in reversed(out[:pos]):
            if x is op: return n
            if x.kind in kinds: n += 1
        raise RuntimeError
    for ins in prog:
        if ins.kind == 'wait':
            if 'vmtag' in ins.meta:
                tags = ins.meta['vmtag']; tags = tags if isinstance(tags, (list, tuple)) else [tags]
                idx = [i for i, x in enumerate(vm) if x.meta.get('tag') in tags]
                ins.meta['vm'] = (len(vm) - 1 - max(idx)) if idx else None
                for t in tags:
                    assert any(x.meta.get('tag') == t for x in out), f"waitvm on never-issued tag {t}"
            if 'lgtag' in ins.meta:
                tags = ins.meta['lgtag']; tags = tags if isinstance(tags, (list, tuple)) else [tags]
                idx = [i for i, x in enumerate(lg) if x.meta.get('tag') in tags]
                ins.meta['lg'] = (len(lg) - 1 - max(idx)) if idx else None
            if ins.meta.get('vm') is None and ins.meta.get('lg') is None:
                continue
            if out and out[-1].kind == 'wait':
                p = out[-1]
                for k in ('vm', 'lg'):
                    if ins.meta.get(k) is not None:
                        p.meta[k] = ins.meta[k] if p.meta.get(k) is None else min(p.meta[k], ins.meta[k])
                apply(p); continue
            out.append(ins); apply(ins); continue
        touched = set(ins.rd) | set(ins.wr)
        for q, key, kinds in ((lg, 'lg', ('dsr', 'dsw')), (vm, 'vm', ('dma', 'vld', 'vst'))):
            need = None
            for x in q:
                if set(x.wr) & touched: need = x
            if need is None: continue
            pos = len(out)
            j = len(out) - 1
            while j >= 0 and out[j].kind not in ('mfma', 'label', 'bar', 'branch') and out[j] is not need: j -= 1
            if j >= 0 and out[j].kind == 'mfma': pos = j + 1
            n = count_after(q, pos, kinds, need)
            nreal = count_after(q, len(out), kinds, need)
            if pos < len(out) and out[pos].kind == 'wait':
                p = out[pos]; p.meta[key] = n if p.meta.get(key) is None else min(p.meta[key], n)
            elif pos > 0 and out[pos - 1].kind == 'wait':
                p = out[pos - 1]; p.meta[key] = n if p.meta.get(key) is None else min(p.meta[key], n)
            else:
                out.insert(pos, Ins("; wait", 'wait', **{key: n}))
            auto += 1
            if key == 'lg': lg = lg[len(lg) - nreal:] if nreal else []
            else: vm = vm[len(vm) - nreal:] if nreal else []
        out.append(ins)
        if ins.kind in ('dsr', 'dsw'): lg.append(ins)
        if ins.kind in ('dma', 'vld', 'vst'): vm.append(ins)
        if ins.kind == 'smem': pass
        assert len(vm) <= 63, "too many vmem outstanding"
    for x in out:
        if x.kind == 'wait':
            parts = []
            if x.meta.get('vm') is not None: parts.append(f"vmcnt({min(x.meta['vm'],63)})")
            if x.meta.get('lg') is not None: parts.append(f"lgkmcnt({min(x.meta['lg'],15)})")
            x.text = "s_waitcnt " + " ".join(parts)
    return out

def states(x):
    if x.kind == 'label': return 0
    if x.kind == 'nop': return x.meta['n'] + 1
    return 1

def fix_hazards(prog, verbose=False):
    out = []
    added = 0
    for ins in prog:
        if ins.kind == 'label': out.append(ins); continue
        need = 0
        dist = 0
        rd, wr = set(ins.rd), set(ins.wr)
        for p in reversed(out):
            if dist >= 12: break
            if p.kind == 'label': continue
            pw, pr = set(p.wr), set(p.rd)
            req = 0
            if p.kind in VALU_KINDS:
                vw = {r for r in pw if r[0] in 'va'}
                sw = {r for r in pw if r[0] in ('s', 'vcc')}
                if ins.kind == 'mfma' and vw & rd: req = max(req, 2)
                if ins.kind == 'perm' and vw & rd: req = max(req, 2)
                if ins.meta.get('dpp') and vw & rd: req = max(req, 2)
                if ins.meta.get('rfl') and vw & rd: req = max(req, 1)
                if p.kind == 'trans' and ins.kind != 'trans' and vw & rd: req = max(req, 1)
                if sw & rd:
                    if ins.kind in ('dma', 'vld', 'vst'): req = max(req, 5)
                    elif ins.kind in VALU_KINDS: req = max(req, 2)
                    else: req = max(req, 2)
            if p.kind == 'mfma':
                d = set(p.meta['D'].regs())
                if ins.kind == 'mfma':
                    c = ins.meta['C']
                    ab = set(ins.meta['A'].regs()) | set(ins.meta['B'].regs())
                    if d & ab: req = max(req, 8)
                    if c is not None and d & set(c.regs()) and set(c.regs()) != d: req = max(req, 6)
                    if d & wr and (c is None or set(c.regs()) != d): req = max(req, 6)
                elif d & (rd | wr): req = max(req, 8)
                c = p.meta['C']
                if c is not None and ins.kind in VALU_KINDS and set(c.regs()) & wr: req = max(req, 3)
            if p.kind == 'salu' and ('m0', 0) in pw and ins.kind == 'dma': req = max(req, 1)
            if p.kind == 'vst' and set(p.meta['data'].regs()) & wr: req = max(req, 2)
            if req - dist > need: need = req - dist
            dist += states(p)
        if need > 0:
            out.append(nop(need - 1)); added += 1
            if verbose: print(f"hazard nop {need} before: {ins.text}")
        out.append(ins)
    return out, added

def check_tags(prog):
    cur = {}
    for i, x in enumerate(prog):
        for reg, tag in x.meta.get('exp', []):
            for r in reg.regs():
                assert cur.get(r) == tag, f"tag mismatch at {i} '{x.text}': {r} has {cur.get(r)} expected {tag}"
        wt = x.meta.get('wtag')
        for r in x.wr: cur[r] = wt

def check_lds(prog):
    objs = {}
    lgq, vmq = [], []
    done_at = {}
    bars = []
    for i, x in enumerate(prog):
        if x.kind == 'wait':
            if x.meta.get('lg') is not None:
                n = x.meta['lg']
                while len(lgq) > n: done_at[id(lgq.pop(0))] = i
            if x.meta.get('vm') is not None:
                n = x.meta['vm']
                while len(vmq) > n: done_at[id(vmq.pop(0))] = i
        if x.kind == 'bar': bars.append(i)
        if 'ldsw' in x.meta:
            obj, lo, hi, samewave = x.meta['ldsw']
            assert 0 <= lo < hi <= 163840
            for on, o in objs.items():
                if on == obj or o['dead']: continue
                if o['lo'] < hi and lo < o['hi']:
                    assert o['reads'] or o.get('noread'), f"overwriting unread obj {on} by {obj} at {i}"
                    for r in o['reads'] + o['writes']:
                        d = done_at.get(id(r))
                        assert d is not None, f"LDS WAR: {obj} overwrites {on} with pending access '{r.text}' at {i}"
                        if not samewave:
                            assert any(b > d for b in bars), f"LDS WAR: no barrier between last access of {on} and write of {obj} at {i}"
                    o['dead'] = True
            o = objs.setdefault(obj, dict(lo=lo, hi=hi, writes=[], reads=[], dead=False))
            assert not o['reads'], f"write to {obj} after reads at {i}"
            o['lo'] = min(o['lo'], lo); o['hi'] = max(o['hi'], hi)
            o['writes'].append(x)
        if 'ldsr' in x.meta:
            obj, shared = x.meta['ldsr']
            o = objs[obj]
            assert not o['dead'], f"read of dead obj {obj} at {i}"
            if 'nw' in x.meta: assert len(o['writes']) == x.meta['nw'], (obj, len(o['writes']))
            for w in o['writes']:
                d = done_at.get(id(w))
                assert d is not None, f"LDS RAW: read of {obj} at {i} before write completes"
                if shared: assert any(b > d for b in bars), f"LDS RAW: no barrier for shared {obj} at {i}"
            o['reads'].append(x)
        if x.kind in ('dsr', 'dsw'): lgq.append(x)
        if x.kind in ('dma', 'vld', 'vst'): vmq.append(x)

def cost(x):
    k = x.kind
    if k == 'label': return 0
    if k == 'nop': return 4 * (x.meta['n'] + 1)
    if k in ('trans', 'dma', 'vld'): return 8
    if k == 'dsw': return 20 if 'b128' in x.text else (12 if 'b64' in x.text else 8)
    if k == 'vst': return 20
    if k == 'bar': return 16
    return 4
def estimate(prog, marks=True):
    t = 0; vec_ok = 0; mf_ok = 0; prev = None; res = []; nm = 0
    for x in prog:
        if x.kind == 'label':
            if x.text.startswith(';#'): res.append((x.text, t, nm))
            continue
        if x.kind == 'mfma':
            t = max(t, mf_ok, vec_ok); mf_ok = t + 16; vec_ok = t + 8; t += 4; nm += 1
        elif x.kind == 'pk':
            t = max(t, vec_ok, mf_ok + 8 if t < mf_ok else 0); t += 4
        elif x.kind in VALU_KINDS or x.kind in MEM_KINDS:
            t = max(t, vec_ok)
            if x.kind in MEM_KINDS and prev is not None and prev.kind in VALU_KINDS: t += 8
            t += cost(x)
        else:
            t += cost(x)
        prev = x
    res.append(("end", t, nm))
    return res

class Item:
    def __init__(self, ins, lo=0, hi=10**9):
        self.ins = ins if isinstance(ins, list) else [ins]
        self.lo, self.hi = lo, hi
    def vcost(self): return sum(cost(x) for x in self.ins if x.kind not in SCALAR_KINDS)
    def nsc(self): return sum(1 for x in self.ins if x.kind in SCALAR_KINDS)
    def ismem(self): return any(x.kind in MEM_KINDS for x in self.ins)
    def isscalar(self): return all(x.kind in SCALAR_KINDS for x in self.ins)

def weave(mf, queues, reserve=None, verbose=False):
    reserve = reserve or set()
    qs = [list(q) for q in queues]
    for q in qs:
        for i in range(len(q) - 2, -1, -1): q[i].hi = min(q[i].hi, q[i + 1].hi)
    out = []
    n = len(mf)
    for g in range(n):
        out.append(mf[g])
        budget = 8; sc = 0 if g in reserve else 1
        placed = []
        last = g == n - 1
        progress = True
        while progress:
            progress = False
            cands = []
            for qi, q in enumerate(qs):
                if not q or q[0].lo > g: continue
                it = q[0]
                c = it.vcost() + 4 * max(0, it.nsc() - sc)
                forced = it.hi <= g or last
                big = it.vcost() > 8 and budget == 8
                if c <= budget or forced or big: cands.append((0 if forced else 1, qi, c))
            if not cands: break
            cands.sort()
            _, qi, c = cands[0]
            it = qs[qi].pop(0)
            budget -= c; sc = max(0, sc - it.nsc())
            placed.append((qi, it)); progress = True
        def cls(it): return 0 if it.isscalar() else (1 if it.ismem() else 2)
        emitted = []
        rem = list(placed)
        while rem:
            best = None
            for k, (qi, it) in enumerate(rem):
                if any(q2 == qi for q2, _ in rem[:k]): continue
                if best is None or cls(it) < cls(rem[best][1]): best = k
            emitted.append(rem.pop(best)[1])
        for it in emitted: out += it.ins
    for q in qs: assert not q, f"unplaced items: {[x.text for it in q for x in it.ins][:5]} lo={q[0].lo}"
    return out
```

```python
import sys, math, struct
from asmlib import *

NAME = "concat_heads__gqa_block_cached__gqa_block_cached__near_ridge"
SLOT = 16384

class Cfg:
    stamps = False
    lead = 2
    st_flags = " sc1"
cfg = Cfg()

vL = V(0)
vT = [V(1), V(2), V(3)]
voffK = [V(4 + i) for i in range(4)]
voffV = [V(8), V(9)]
voffW = [V(10 + i) for i in range(4)]
aK = [V(14 + i) for i in range(4)]
aV = [V(18 + i) for i in range(8)]
aLin = V(26); aLin2 = V(27)
aW = [V(28 + i) for i in range(4)]
voffX = V(32); vX1 = V(33); vX2 = V(34); vX3 = V(35)
def negm(qt): return V(36 + 4 * qt, 4)
def Pf(buf, qt): return V(56 + 20 * buf + 4 * qt, 4)
def Sf(buf, t, qt): return V(96 + 40 * buf + 4 * (5 * t + qt), 4)
def Qacc(mt, qt): return V(96 + 4 * (5 * mt + qt), 4)
def Of(j, qt): return V(176 + 4 * (5 * j + qt), 4) if j < 4 else A(4 * (5 * (j - 4) + qt), 4)
def s1A(buf, mt): return A(36 * buf + 4 * mt, 4)
def s1B(buf, qt): return A(36 * buf + 16 + 4 * qt, 4)
def Qf(s, qt): return A(80 + 4 * (5 * s + qt), 4)
def Lacc(qt): return A(160 + 4 * qt, 4)
ONES = A(180, 4)
NFR = 6
def FR(i): return A(184 + 4 * (i % NFR), 4)
def OB(ks, qt): return A(4 * (5 * ks + qt), 4)
def G0acc(mt, qt): return V(96 + 4 * (5 * mt + qt), 4)
def G1acc(mt, qt): return V(176 + 4 * (5 * mt + qt), 4)

srdX, srdWQ, srdK, srdV, srdWO, srdWS = S(4, 4), S(8, 4), S(12, 4), S(16, 4), S(20, 4), S(24, 4)
srdST = S(28, 4)
sW, sW4k, sOffA, sOffB, sW1k = S(36), S(37), S(38), S(39), S(42)
sScale = S(40, 2)
sTmp = [S(43), S(44), S(45), S(46), S(47)]
sBR, sB, sHP = S(76), S(77), S(78)
sStamp = 80

def f32hex(x): return "0x%08x" % struct.unpack("<I", struct.pack("<f", x))[0]

class AddrSet:
    def __init__(self, regs, base=0):
        self.regs = regs; self.base = [base] * len(regs)

def fix_windows(queue):
    uses = {}
    for k, it in enumerate(queue):
        for x in it.ins:
            if 'addr' in x.meta:
                st, idx, off = x.meta['addr']
                uses.setdefault((id(st), idx), []).append((k, x))
    inserts = {}
    for key, lst in uses.items():
        st, idx, _ = lst[0][1].meta['addr']
        for u, (k, x) in enumerate(lst):
            off = x.meta['addr'][2]
            if not (0 <= off - st.base[idx] <= 65535):
                lo = hi = off
                for (_, y) in lst[u + 1:]:
                    o = y.meta['addr'][2]
                    if max(hi, o) - (min(lo, o) // SLOT) * SLOT > 65535: break
                    lo, hi = min(lo, o), max(hi, o)
                nb = (lo // SLOT) * SLOT
                d = nb - st.base[idx]
                ins = valu("v_add_u32", st.regs[idx], "0x%x" % (d & 0xffffffff), st.regs[idx])
                if u > 0 and lst[u - 1][0] < k: pos = lst[u - 1][0] + 1
                elif u > 0: raise RuntimeError("window switch inside an item")
                else: pos = 0
                inserts.setdefault(pos, []).append(ins)
                st.base[idx] = nb
            x.text = x.text.replace("offset:0", f"offset:{off - st.base[idx]}")
    out = []
    for k in range(len(queue) + 1):
        for ins in inserts.get(k, []):
            lo = queue[k - 1].lo if k > 0 else (queue[0].lo if queue else 0)
            out.append(Item(ins, lo=lo))
        if k < len(queue): out.append(queue[k])
    return out

def flat(queue): return [x for it in queue for x in it.ins]

stamp_names = []
def stamp(name):
    out = [comment("# " + name)]
    out[0].text = ";# " + name
    if cfg.stamps:
        k = len(stamp_names); stamp_names.append(name)
        out += [wait(lg=0), raw(f"s_memtime s[{sStamp}:{sStamp+1}]", 'smem'), raw("s_waitcnt lgkmcnt(0)"),
                raw(f"v_writelane_b32 {vX3}, s{sStamp}, {k}", 'valu')]
    return out

def dma_w(tag, slot, srd, soff, samewave):
    its = [Item(salu("s_add_u32", 'm0', sW4k, "0x%x" % (slot * SLOT))), Item(salu("s_mov_b32", sOffA, "0x%x" % soff))]
    for i in range(4):
        its.append(Item(dma(voffW[i], srd, sOffA, 1024 * i, tag=tag, ldsw=(tag, slot * SLOT, (slot + 1) * SLOT, samewave))))
    return its
def dma_kv(kind, c, slot, samewave):
    tag = f"{kind}{c}"
    its = [Item(salu("s_add_u32", 'm0', sW4k, "0x%x" % (slot * SLOT))), Item(salu("s_mov_b32", sOffA, "0x%x" % (8192 * c)))]
    for i in range(4):
        vo = voffK[i] if kind == 'K' else voffV[i & 1]
        its.append(Item(dma(vo, srdK if kind == 'K' else srdV, sOffA, 1024 * i, tag=tag,
                            ldsw=(tag, slot * SLOT, (slot + 1) * SLOT, samewave))))
    return its
def dma_x(i):
    tag = f"X{i}"; base = 20480 * (i & 1); its = []
    for j in range(5):
        its.append(Item(salu("s_add_u32", 'm0', sW1k, "0x%x" % (base + 4096 * j))))
        its.append(Item(salu("s_mov_b32", sOffA, "0x%x" % (16384 * j + 256 * i))))
        its.append(Item(dma(voffX, srdX, sOffA, 0, tag=tag, ldsw=(tag, base, base + 20480, False))))
    return its
def at(items, lo=None, hi=None):
    for it in items:
        if lo is not None: it.lo = lo
        if hi is not None: it.hi = hi
    return items

def wq_slot(s): return 3 + s % 7

def prologue():
    p = []
    e = p.append
    e(raw("s_cmp_ge_u32 s2, 0x100")); e(raw("s_cbranch_scc1 L_exit", 'branch'))
    e(raw("s_load_dwordx16 s[48:63], s[0:1], 0x0", 'smem'))
    e(raw("s_load_dwordx8 s[64:71], s[0:1], 0x40", 'smem'))
    e(raw("s_load_dwordx2 s[72:73], s[0:1], 0x60", 'smem'))
    e(raw("s_getpc_b64 s[74:75]")); e(label("L_pc"))
    e(valu("v_lshlrev_b32", vT[0], 7, V(0)))
    e(valu("v_min_u32", vT[0], "L_code_end-L_pc-4", vT[0]))
    e(Ins(f"global_load_dword {vX1}, {vT[0]}, s[74:75]", 'vld', rd=[vT[0]], wr=[vX1], tag='pf'))
    e(valu("v_lshrrev_b32", vT[1], 6, V(0)))
    e(valu("v_and_b32", vL, 63, V(0)))
    e(Ins(f"v_readfirstlane_b32 {sW}, {vT[1]}", 'valu', rd=[vT[1]], wr=[sW], rfl=True))
    e(salu("s_and_b32", sBR, "s2", 1))
    e(salu("s_lshr_b32", sTmp[0], "s2", 3))
    e(salu("s_and_b32", sB, sTmp[0], 7))
    e(salu("s_lshr_b32", sTmp[0], sTmp[0], 3))
    e(salu("s_and_b32", sTmp[1], "s2", 6))
    e(salu("s_lshl_b32", sTmp[1], sTmp[1], 1))
    e(salu("s_add_u32", sHP, sTmp[0], sTmp[1]))
    e(salu("s_lshl_b32", sW4k, sW, 12))
    e(salu("s_lshl_b32", sW1k, sW, 10))
    g, n, t = vT
    e(valu("v_lshrrev_b32", g, 4, vL)); e(valu("v_and_b32", n, 15, vL))
    e(salu("s_lshl_b32", sTmp[0], sW, 2))
    e(valu("v_add_u32", t, sTmp[0], g))
    e(valu("v_xor_b32", voffX, n, t)); e(valu("v_lshlrev_b32", voffX, 4, voffX))
    e(valu("v_lshl_add_u32", voffX, t, 10, voffX))
    e(valu("v_and_b32", t, 1, g)); e(valu("v_lshlrev_b32", t, 1, t))
    e(valu("v_and_b32", voffW[0], 7, vL)); e(valu("v_xor_b32", voffW[0], voffW[0], t))
    e(valu("v_lshlrev_b32", voffW[0], 4, voffW[0]))
    e(valu("v_lshrrev_b32", t, 3, vL)); e(valu("v_lshl_add_u32", voffW[0], t, 13, voffW[0]))
    e(salu("s_lshl_b32", sTmp[0], sW, 7))
    e(valu("v_add_u32", voffW[0], sTmp[0], voffW[0]))
    e(valu("v_xor_b32", voffW[1], 64, voffW[0]))
    e(valu("v_add_u32", voffW[2], "0x%x" % (2 * 64512), voffW[0]))
    e(valu("v_add_u32", voffW[3], "0x%x" % (3 * 64512), voffW[1]))
    e(valu("v_add_u32", voffW[1], "0x%x" % 64512, voffW[1]))
    e(raw("s_waitcnt lgkmcnt(0)"))
    e(raw(f"s_cmp_eq_u32 {sBR}, 0"))
    for k, srd in enumerate((srdX, srdK, srdV, srdWQ, srdWO)):
        e(salu("s_cselect_b64", srd.sub(0, 2), S(48 + 2 * k, 2), S(58 + 2 * k, 2)))
    def addbase(srd, off, size):
        e(salu("s_add_u32", srd.sub(0), srd.sub(0), off)); e(salu("s_addc_u32", srd.sub(1), srd.sub(1), 0))
        e(salu("s_mov_b32", srd.sub(2), size)); e(salu("s_mov_b32", srd.sub(3), "0x20000"))
    e(salu("s_mul_i32", sTmp[0], sB, 81920)); addbase(srdX, sTmp[0], 81920)
    e(salu("s_lshl_b32", sTmp[0], sHP, 9)); e(salu("s_sub_u32", sTmp[1], "0x400000", sTmp[0])); addbase(srdWQ, sTmp[0], sTmp[1])
    p += flat(dma_w("WQ0", wq_slot(0), srdWQ, 0, True) + dma_x(0))
    for s in (1, 2, 3): p += flat(dma_w(f"WQ{s}", wq_slot(s), srdWQ, s * 262144, True))
    p += flat(dma_x(1))
    for s in (4, 5, 6): p += flat(dma_w(f"WQ{s}", wq_slot(s), srdWQ, s * 262144, True))
    e(salu("s_lshr_b32", sTmp[0], sHP, 1)); e(salu("s_lshl_b32", sTmp[1], sB, 3)); e(salu("s_add_u32", sTmp[0], sTmp[0], sTmp[1]))
    e(salu("s_lshl_b32", sTmp[0], sTmp[0], 17)); addbase(srdK, sTmp[0], "0x20000"); addbase(srdV, sTmp[0], "0x20000")
    e(salu("s_lshl_b32", sTmp[0], sHP, 18)); addbase(srdWO, sTmp[0], "0x40000")
    e(salu("s_lshl_b32", sTmp[0], sBR, 3)); e(salu("s_add_u32", sTmp[0], sTmp[0], sB)); e(salu("s_lshl_b32", sTmp[0], sTmp[0], 4))
    e(salu("s_add_u32", sTmp[0], sTmp[0], sHP)); e(salu("s_mul_i32", sTmp[0], sTmp[0], 81920))
    e(salu("s_mov_b64", srdWS.sub(0, 2), S(72, 2))); addbase(srdWS, sTmp[0], 81920)
    if cfg.stamps:
        e(salu("s_mov_b64", srdST.sub(0, 2), S(72, 2))); addbase(srdST, "0x4000000", "0x100000")
        e(valu("v_mov_b32", vX3, 0))
    e(salu("s_lshr_b32", sTmp[0], sW, 1)); e(salu("s_lshl_b32", sTmp[0], sTmp[0], 16))
    e(salu("s_and_b32", sTmp[1], sW, 1)); e(salu("s_lshl_b32", sTmp[2], sTmp[1], 12)); e(salu("s_add_u32", sTmp[0], sTmp[0], sTmp[2]))
    e(valu("v_lshl_add_u32", t, g, 8, sTmp[0]))
    e(valu("v_xor_b32", voffK[0], n, g)); e(valu("v_lshl_add_u32", voffK[0], voffK[0], 4, t))
    for i in (1, 2, 3): e(valu("v_xor_b32", voffK[i], "0x%x" % (i << 6), voffK[0]))
    e(valu("v_lshlrev_b32", voffV[0], 1, g)); e(valu("v_xor_b32", voffV[0], n, voffV[0])); e(valu("v_lshl_add_u32", voffV[0], voffV[0], 4, t))
    e(valu("v_xor_b32", voffV[1], "0x80", voffV[0]))
    e(valu("v_xor_b32", aK[0], n, g)); e(valu("v_lshlrev_b32", aK[0], 4, aK[0])); e(valu("v_lshl_add_u32", aK[0], n, 8, aK[0]))
    for i in (1, 2, 3): e(valu("v_xor_b32", aK[i], "0x%x" % (i << 6), aK[0]))
    e(salu("s_lshl_b32", sTmp[2], sTmp[1], 2)); e(salu("s_lshl_b32", sTmp[3], sTmp[1], 13))
    e(valu("v_lshrrev_b32", t, 2, vL)); e(valu("v_and_b32", aV[0], 7, t)); e(valu("v_xor_b32", aV[0], sTmp[2], aV[0]))
    e(valu("v_lshlrev_b32", aV[0], 5, aV[0])); e(valu("v_lshl_add_u32", aV[0], t, 8, aV[0]))
    e(valu("v_and_b32", t, 3, vL)); e(valu("v_lshl_add_u32", aV[0], t, 3, aV[0])); e(valu("v_add_u32", aV[0], sTmp[3], aV[0]))
    for j in range(1, 8): e(valu("v_xor_b32", aV[j], "0x%x" % (j << 5), aV[0]))
    e(valu("v_lshl_add_u32", aW[0], t, 3, sW4k))
    e(valu("v_bfe_u32", t, vL, 3, 2)); e(valu("v_lshl_add_u32", aW[0], t, 5, aW[0]))
    e(valu("v_mov_b32", vX2, aW[0]))
    e(valu("v_bfe_u32", t, vL, 2, 2)); e(valu("v_lshl_add_u32", t, g, 3, t)); e(valu("v_lshl_add_u32", aW[0], t, 7, aW[0]))
    e(valu("v_add_u32", aW[0], "0x%x" % (3 * SLOT), aW[0]))
    for i in (1, 2, 3): e(valu("v_xor_b32", aW[i], "0x%x" % (i << 5), aW[0]))
    e(salu("s_mul_i32", sTmp[0], sW, 10240))
    e(valu("v_lshrrev_b32", t, 1, g)); e(valu("v_lshl_add_u32", aLin2, t, 8, sTmp[0]))
    e(valu("v_lshl_add_u32", aLin2, n, 4, aLin2)); e(valu("v_and_b32", t, 1, g)); e(valu("v_lshl_add_u32", aLin2, t, 3, aLin2))
    e(salu("s_lshr_b32", sTmp[0], sW, 1)); e(salu("s_mul_i32", sTmp[0], sTmp[0], 20480))
    e(valu("v_lshl_add_u32", aLin, vL, 4, sTmp[0]))
    c = math.log2(math.e) / math.sqrt(128.0)
    e(salu("s_mov_b32", sScale.sub(0), f32hex(c))); e(salu("s_mov_b32", sScale.sub(1), f32hex(c)))
    e(valu("v_mov_b32", t, "0x3f803f80"))
    for i in range(4): e(valu("v_accvgpr_write_b32", ONES.sub(i), t))
    for qt in range(5):
        for i in range(4): e(valu("v_mov_b32", negm(qt).sub(i), 0, wtag='negm'))
    return p

setW = AddrSet(aW, 3 * SLOT)
setK = AddrSet(aK, 0)
setV = AddrSet(aV, 0)

def s1_reads(s):
    its = []
    buf = s & 1
    for qt in range(5):
        its.append(Item(dsr("ds_read_b128", s1B(buf, qt), aK[s & 3], 0, addr=(setK, s & 3, 20480 * ((s >> 2) & 1) + 4096 * qt),
                            wtag=f"x{s}.{qt}", ldsr=(f"X{s>>2}", True), nw=5)))
    for mt in range(4):
        for t in range(2):
            its.append(Item(dsr("ds_read_b64_tr_b16", s1A(buf, mt).sub(2 * t, 2), aW[mt], 0, addr=(setW, mt, wq_slot(s) * SLOT + 512 * t),
                                wtag=f"wq{s}.{mt}", ldsr=(f"WQ{s}", False), nw=4)))
    return its[5:7] + its[0:5] + its[7:]

KV_SLOT = {}
def stage1():
    p = []
    p += [waitvm(["WQ0", "X0"]), bar("start")]
    p += stamp("first data")
    p += flat(fix_windows(s1_reads(0)))
    mf = []; rq = []; dq = []
    early = [('K', 0), ('K', 1), ('V', 0), ('K', 2), ('V', 1), ('K', 3), ('V', 2)]
    for s in range(16):
        g0 = 20 * s
        for mt in range(4):
            for qt in range(5):
                d = Qacc(mt, qt)
                mf.append(mfma(d, s1A(s & 1, mt), s1B(s & 1, qt), d if s else 0,
                               exp=[(s1A(s & 1, mt), f"wq{s}.{mt}"), (s1B(s & 1, qt), f"x{s}.{qt}")] + ([(d, 'q')] if s else []), wtag='q'))
        rq.append(Item(wait(lg=0), lo=g0, hi=g0) if s == 0 else Item(wait(lg=0), lo=g0 - 1, hi=g0 - 1))
        if s + 7 <= 15: dq += at(dma_w(f"WQ{s+7}", wq_slot(s), srdWQ, (s + 7) * 262144, True), lo=g0 + (1 if s == 0 else 0), hi=g0 + 7)
        else:
            kind, c = early[s - 9]; KV_SLOT[f"{kind}{c}"] = wq_slot(s)
            dq += at(dma_kv(kind, c, wq_slot(s), True), lo=g0, hi=g0 + 7)
        if s < 15:
            if (s + 1) % 4 == 0:
                i = (s + 1) // 4
                rq.append(Item([waitvm([f"WQ{s+1}", f"X{i}"]), bar(f"x{i}")], lo=g0 + 7, hi=g0 + 7))
                if i + 1 <= 3: dq += at(dma_x(i + 1), lo=g0 + 8, hi=g0 + 19)
            else:
                rq.append(Item(waitvm(f"WQ{s+1}"), lo=g0 + 7, hi=g0 + 7))
            rq += at(s1_reads(s + 1), lo=g0 + 7, hi=g0 + 15)
        else:
            rq.append(Item(bar("xfree"), lo=g0 + 7, hi=g0 + 7))
    rq = fix_windows(rq)
    p += weave(mf, [rq, dq])
    return p

def trans1():
    p = stamp("stage1 done")
    for mt in range(4):
        for qt in range(5):
            d = Qacc(mt, qt)
            p.append(valu("v_pk_mul_f32", d.sub(0, 2), d.sub(0, 2), sScale, kind='pk', exp=[(d, 'q')], wtag='q1'))
            p.append(valu("v_pk_mul_f32", d.sub(2, 2), d.sub(2, 2), sScale, kind='pk', wtag='q1'))
        for qt in range(5):
            d = Qacc(mt, qt)
            p.append(cvtpk(d.sub(0), d.sub(0), d.sub(1), wtag='q2')); p.append(cvtpk(d.sub(1), d.sub(2), d.sub(3), wtag='q2'))
        for qt in range(5):
            d = Qacc(mt, qt)
            p.append(dsw("ds_write_b64", aLin2, d.sub(0, 2), ((mt >> 1) * 5 + qt) * 1024 + (mt & 1) * 512, ldsw=("QX", 0, 40960, False)))
    p.append(salu("s_and_b32", sTmp[0], sW, 1)); p.append(salu("s_lshl_b32", sTmp[0], sTmp[0], 13))
    for i in range(4): p.append(valu("v_add_u32", aK[i], sTmp[0], aK[i]))
    g, n, t = vT
    p.append(valu("v_lshrrev_b32", t, 2, vL)); p.append(valu("v_lshl_add_u32", aW[0], t, 7, vX2))
    for i in (1, 2, 3): p.append(valu("v_xor_b32", aW[i], "0x%x" % (i << 5), aW[0]))
    setW.base = [0] * 4
    p.append(valu("v_lshrrev_b32", g, 4, vL)); p.append(valu("v_lshlrev_b32", g, 1, g))
    p.append(valu("v_and_b32", voffW[0], 7, vL)); p.append(valu("v_xor_b32", voffW[0], voffW[0], g)); p.append(valu("v_lshlrev_b32", voffW[0], 4, voffW[0]))
    p.append(valu("v_lshrrev_b32", t, 3, vL)); p.append(valu("v_lshl_add_u32", voffW[0], t, 10, voffW[0]))
    p.append(salu("s_lshl_b32", sTmp[0], sW, 7)); p.append(valu("v_add_u32", voffW[0], sTmp[0], voffW[0]))
    for i in (1, 2, 3): p.append(valu("v_add_u32", voffW[i], "0x%x" % (i * 7168), voffW[0]))
    p += [wait(lg=0), waitvm("K0"), bar("R-1")]
    return p

WO_SLOT = {}
EX_SLOT = []
MISC = [None]
def wo_soff(u): return (u & 7) * 32768 + 512 * (u >> 3)

def attention():
    quints = []
    def qk(c): return [('QK', c, (t, s)) for t in range(2) for s in range(4)]
    def pv(c, order=range(8)): return [('RS', c, None)] + [('PV', c, j) for j in order]
    steps = [qk(0), qk(1)] + [pv(c - 1) + qk(c + 1) for c in range(1, 7)] + [pv(6), pv(7, [4, 5, 6, 7, 0, 1, 2, 3])]
    first_quint = []
    for st in steps:
        first_quint.append(len(quints)); quints += st
    mf = []; rq = []; fr = 0
    qk_done = {}; pv_start = {}; pv_done = {}; qk_start = {}
    later = [('K', 4), ('V', 3), ('K', 5), ('V', 4), ('K', 6), ('V', 5), ('K', 7), ('V', 6), ('V', 7)]
    dq = []; nwo = 0
    pre = []
    for s in range(4):
        for qt in range(5):
            pre.append(dsr("ds_read_b128", Qf(s, qt), aLin, (s * 5 + qt) * 1024, wtag=f"Q{s}.{qt}", ldsr=("QX", True), nw=20))
    reserve = set()
    bar_gap = {}
    free_slots = []
    for qi, (kind, c, idx) in enumerate(quints):
        g0 = 5 * qi
        rlo = 5 * (qi - cfg.lead); rhi = rlo + 4
        if qi in first_quint and qi > 0:
            k = first_quint.index(qi) - 1
            bg = rlo + (4 if kind == 'RS' else -1)
            need = ([f"V{k-1}"] if k >= 1 else []) + ([f"K{k+1}"] if k + 1 <= 7 else [])
            rq.append(Item([wait(lg=0), waitvm(need), bar(f"R{k}")], lo=bg, hi=bg)); bar_gap[k] = bg
            rel = ([0, 1, 2] if k == 0 else []) + ([KV_SLOT[f"V{k-2}"]] if k >= 2 else []) + ([KV_SLOT[f"K{k}"]] if k <= 7 else [])
            for sl in rel:
                if later:
                    kk, cc = later.pop(0); KV_SLOT[f"{kk}{cc}"] = sl
                    dq += at(dma_kv(kk, cc, sl, False), lo=bg + 1)
                elif nwo < 3:
                    WO_SLOT[nwo] = sl
                    dq += at(dma_w(f"WO{nwo}", sl, srdWO, wo_soff(nwo), False), lo=bg + 1); nwo += 1
                else: free_slots.append(sl)
        if kind == 'QK':
            t, s = idx
            f = FR(fr); fr += 1
            r = dsr("ds_read_b128", f, aK[s], 0, addr=(setK, s, KV_SLOT[f"K{c}"] * SLOT + 4096 * t), wtag=f"K{c}.{t}.{s}", ldsr=(f"K{c}", True), nw=4)
            rq.append(Item(r, lo=rlo, hi=rhi))
            for qt in range(5):
                d = Sf(c & 1, t, qt)
                mf.append(mfma(d, f, Qf(s, qt), d if s else negm(qt), wtag=f"S{c}.{s}",
                               exp=[(f, f"K{c}.{t}.{s}"), (Qf(s, qt), f"Q{s}.{qt}")] + ([(d, f"S{c}.{s-1}")] if s else [(negm(qt), 'negm')])))
                if s == 3: qk_done[(c, t, qt)] = len(mf) - 1
                if s == 0: qk_start[(c, t, qt)] = len(mf) - 1
            reserve.add(g0 - 1)
        elif kind == 'PV':
            j = idx
            f = FR(fr); fr += 1
            for t in range(2):
                r = dsr("ds_read_b64_tr_b16", f.sub(2 * t, 2), aV[j], 0, addr=(setV, j, KV_SLOT[f"V{c}"] * SLOT + 4096 * t), wtag=f"V{c}.{j}", ldsr=(f"V{c}", True), nw=4)
                rq.append(Item(r, lo=rlo, hi=rhi))
            for qt in range(5):
                d = Of(j, qt)
                mf.append(mfma(d, f, Pf(c & 1, qt), d if c else 0, wtag=f"O{c}",
                               exp=[(f, f"V{c}.{j}"), (Pf(c & 1, qt), f"P{c}")] + ([(d, f"O{c-1}")] if c else [])))
                pv_done[(c, j, qt)] = len(mf) - 1
            reserve.add(g0 - 1)
        else:
            for qt in range(5):
                d = Lacc(qt)
                mf.append(mfma(d, ONES, Pf(c & 1, qt), d if c else 0, wtag=f"L{c}", exp=[(Pf(c & 1, qt), f"P{c}")]))
                pv_start[(c, qt)] = len(mf) - 1
    rq = fix_windows(rq)
    head = [it for it in rq if it.lo < 0]; rq = [it for it in rq if it.lo >= 0]
    eq = []; cq = []
    for c in range(8):
        for t in range(2):
            for qt in range(5):
                sreg = Sf(c & 1, t, qt); preg = Pf(c & 1, qt)
                lo = qk_done[(c, t, qt)] + 5
                hi = pv_start[(c, qt)] - 2
                for h in range(2):
                    for i in (2 * h, 2 * h + 1):
                        eq.append(Item(vexp(sreg.sub(i), sreg.sub(i), exp=[(sreg.sub(i), f"S{c}.3")], wtag=f"E{c}"), lo=lo, hi=hi - 1))
                    eq.append(Item(cvtpk(preg.sub(2 * t + h), sreg.sub(2 * h), sreg.sub(2 * h + 1), exp=[(sreg.sub(2 * h, 2), f"E{c}")], wtag=f"P{c}"), lo=lo, hi=hi))
    vq = []
    pend = []
    for it in eq:
        if it.ins[0].kind == 'trans':
            vq.append(it)
            if len(pend) == 2: vq += pend; pend = []
        else: pend.append(it)
    vq += pend
    assert len(free_slots) == 6, free_slots
    MISC[0] = free_slots[0]; EX_SLOT[:] = free_slots[1:]
    setE = AddrSet([aLin2], 0)
    xq = [Item(valu("v_lshl_add_u32", aLin2, vL, 4, sW4k), lo=bar_gap[7])]
    T = V(56, 12)
    lastrs = pv_start[(7, 4)]
    for qt in range(5): xq.append(Item(valu("v_mov_b32", T.sub(5 + qt), negm(qt).sub(0)), lo=lastrs))
    for qt in range(5): xq.append(Item(valu("v_accvgpr_read_b32", T.sub(qt), Lacc(qt).sub(0), exp=[(Lacc(qt), "L7")]), lo=lastrs + 6))
    xq.append(Item(valu("v_mov_b32", T.sub(10), 0), lo=lastrs)); xq.append(Item(valu("v_mov_b32", T.sub(11), 0), lo=lastrs))
    wq_ = []
    for k in range(3):
        wq_.append(Item(dsw("ds_write_b128", aLin2, T.sub(4 * k, 4), 0, addr=(setE, 0, MISC[0] * SLOT + 1024 * k),
                           ldsw=("MISC", MISC[0] * SLOT, (MISC[0] + 1) * SLOT, False)), lo=max(lastrs + 6, bar_gap[8] + 1)))
    order = sorted(range(5), key=lambda q: EX_SLOT[q])
    for qt in order:
        for jj in range(4):
            wq_.append(Item(dsw("ds_write_b128", aLin2, Of(4 + jj, qt), 0, addr=(setE, 0, EX_SLOT[qt] * SLOT + 1024 * jj), exp=[(Of(4 + jj, qt), "O7")],
                               ldsw=(f"EX{qt}", EX_SLOT[qt] * SLOT, (EX_SLOT[qt] + 1) * SLOT, False)), lo=pv_done[(7, 7, qt)] + 5))
    wq_ = fix_windows(wq_)
    xq += wq_
    hf = flat(head)
    p = stamp("q exchanged") + hf[:0]
    p += [x for x in hf] + pre
    p += weave(mf, [rq, vq, dq, xq], reserve=reserve)
    return p

def trans2():
    p = stamp("attention done")
    p += [wait(lg=0), bar("E1")]
    sl = KV_SLOT["V7"]; WO_SLOT[3] = sl
    p += flat(dma_w("WO3", sl, srdWO, wo_soff(3), False))
    setE = AddrSet([aLin], 0)
    p.append(salu("s_xor_b32", sTmp[0], sW4k, "0x1000")); p.append(valu("v_lshl_add_u32", aLin, vL, 4, sTmp[0]))
    T = V(56, 12); U = V(68, 12)
    q = []
    for k in range(3):
        q.append(Item(dsr("ds_read_b128", U.sub(4 * k, 4), aLin, 0, addr=(setE, 0, MISC[0] * SLOT + 1024 * k), ldsr=("MISC", True), nw=3)))
    order = sorted(range(5), key=lambda q: EX_SLOT[q])
    def Rv(jj, qt): return V(96 + 4 * (5 * jj + qt), 4)
    rd = {}
    for qt in order:
        rd[qt] = [Item(dsr("ds_read_b128", Rv(jj, qt), aLin, 0, addr=(setE, 0, EX_SLOT[qt] * SLOT + 1024 * jj), ldsr=(f"EX{qt}", True), nw=4, wtag='rv')) for jj in range(4)]
    q += rd[order[0]] + rd[order[1]] + rd[order[2]]
    def F(qt): return V(80 + 2 * qt, 2)
    fac = []
    tmp = V(90, 5)
    for qt in range(5): fac.append(valu("v_min_f32", tmp.sub(qt), T.sub(5 + qt), U.sub(5 + qt)))
    for qt in range(5):
        fac.append(valu("v_sub_f32", F(qt).sub(0), tmp.sub(qt), T.sub(5 + qt)))
        fac.append(valu("v_sub_f32", F(qt).sub(1), tmp.sub(qt), U.sub(5 + qt)))
    for qt in range(5):
        fac.append(vexp(F(qt).sub(0), F(qt).sub(0))); fac.append(vexp(F(qt).sub(1), F(qt).sub(1)))
    for qt in range(5): fac.append(valu("v_mul_f32", tmp.sub(qt), T.sub(qt), F(qt).sub(0)))
    for qt in range(5): fac.append(valu("v_fmac_f32", tmp.sub(qt), U.sub(qt), F(qt).sub(1), rmw=True))
    for qt in range(5): fac.append(valu("v_rcp_f32", tmp.sub(qt), tmp.sub(qt), kind='trans'))
    for qt in range(5):
        fac.append(valu("v_mul_f32", F(qt).sub(0), F(qt).sub(0), tmp.sub(qt))); fac.append(valu("v_mul_f32", F(qt).sub(1), F(qt).sub(1), tmp.sub(qt)))
    q += [Item(x) for x in fac]
    q += rd[order[3]] + rd[order[4]]
    for qt in order:
        for jj in range(4):
            r = Rv(jj, qt); o = Of(jj, qt)
            for h in range(2):
                q.append(Item(valu("v_pk_mul_f32", r.sub(2 * h, 2), r.sub(2 * h, 2), F(qt), kind='pk', mods=" op_sel:[0,1] op_sel_hi:[1,1]", exp=[(r.sub(2 * h, 2), 'rv')])))
            for h in range(2):
                q.append(Item(valu("v_pk_fma_f32", o.sub(2 * h, 2), o.sub(2 * h, 2), F(qt), r.sub(2 * h, 2), kind='pk', mods=" op_sel_hi:[1,0,1]", exp=[(o.sub(2 * h, 2), 'O7')])))
        for bk in range(2):
            d = Rv(2 * bk, qt)
            for t in range(2):
                o = Of(2 * bk + t, qt)
                q.append(Item(cvtpk(d.sub(2 * t), o.sub(0), o.sub(1)))); q.append(Item(cvtpk(d.sub(2 * t + 1), o.sub(2), o.sub(3))))
        for bk in range(2):
            q.append(Item(dsw("ds_write_b128", aLin, Rv(2 * bk, qt), 0, addr=(setE, 0, EX_SLOT[qt] * SLOT + 1024 * bk),
                              ldsw=(f"OG{qt}", EX_SLOT[qt] * SLOT, (EX_SLOT[qt] + 1) * SLOT, True))))
    p += flat(fix_windows(q))
    p += [wait(lg=0), bar("E2")]
    WO_SLOT[4] = MISC[0]
    p += flat(dma_w("WO4", MISC[0], srdWO, wo_soff(4), False))
    return p

def stage4():
    p = stamp("o gathered")
    gaddr = [V(56 + i) for i in range(5)]
    for qt in range(5):
        p.append(salu("s_mov_b32", sTmp[0], "0x%x" % (EX_SLOT[qt] * SLOT))); p.append(valu("v_lshl_add_u32", gaddr[qt], vL, 4, sTmp[0]))
    voffP = V(61)
    p.append(salu("s_mul_i32", sTmp[0], sW, 10240)); p.append(valu("v_lshl_add_u32", voffP, vL, 4, sTmp[0]))
    def bread(ks, qt):
        return dsr("ds_read_b128", OB(ks, qt), gaddr[qt], ((ks >> 1) ^ 1) * 4096 + (ks & 1) * 1024, wtag=f"OB{ks}.{qt}", ldsr=(f"OG{qt}", True), nw=2)
    quints = [(0, ks, mt) for ks in range(8) for mt in range(4)] + [(1, ks, mt) for ks in range(8) for mt in (0, 1)] + [(1, ks, mt) for ks in range(8) for mt in (2, 3)]
    mf = []; rq = []; dq = []; bq = []; reserve = set(); fr = 0
    done = {}
    nxt = 5
    seen = set()
    E3 = 44
    for ks in range(1, 8):
        for qt in range(5): bq.append(Item(bread(ks, qt), lo=0, hi=min(20 * ks - 8, E3 - 6)))
    bq.append(Item([wait(lg=0), bar("E3")], lo=E3, hi=E3))
    rel = []
    for sl in EX_SLOT: rel.append((E3 + 1, sl, False))
    for qi, (sg, ks, mt) in enumerate(quints):
        if sg == 0 and mt == 3: rel.append((5 * qi, None, True, ks))
    rel.sort(key=lambda r: r[0])
    for r in rel:
        if nxt > 15: break
        sl = r[1] if r[1] is not None else WO_SLOT[r[3]]
        WO_SLOT[nxt] = sl
        dq += at(dma_w(f"WO{nxt}", sl, srdWO, wo_soff(nxt), r[2]), lo=r[0]); nxt += 1
    for qi, (sg, ks, mt) in enumerate(quints):
        u = 8 * sg + ks
        rlo = 5 * (qi - cfg.lead); rhi = rlo + 4
        if u not in seen:
            seen.add(u); rq.append(Item(waitvm(f"WO{u}"), lo=rlo - 1, hi=rlo - 1))
        f = FR(fr); fr += 1
        for t in range(2):
            rq.append(Item(dsr("ds_read_b64_tr_b16", f.sub(2 * t, 2), aW[mt], 0, addr=(setW, mt, WO_SLOT[u] * SLOT + 2048 * t),
                               wtag=f"wo{u}.{mt}", ldsr=(f"WO{u}", False), nw=4), lo=rlo, hi=rhi))
        for qt in range(5):
            d = (G0acc if sg == 0 else G1acc)(mt, qt)
            mf.append(mfma(d, f, OB(ks, qt), d if ks else 0, wtag=f"G{sg}.{ks}",
                           exp=[(f, f"wo{u}.{mt}"), (OB(ks, qt), f"OB{ks}.{qt}")] + ([(d, f"G{sg}.{ks-1}")] if ks else [])))
            if ks == 7: done[(sg, mt, qt)] = len(mf) - 1
        reserve.add(5 * qi - 1)
    rq = fix_windows(rq)
    head = [it for it in rq if it.lo < 0]; rq = [it for it in rq if it.lo >= 0]
    def outq(sg, mp):
        its = []
        acc = G0acc if sg == 0 else G1acc
        for qt in range(5):
            a, b = acc(2 * mp, qt), acc(2 * mp + 1, qt)
            lo = done[(sg, 2 * mp + 1, qt)] + 5
            its += [Item(cvtpk(a.sub(0), a.sub(0), a.sub(1), exp=[(a, f"G{sg}.7")]), lo=lo), Item(cvtpk(a.sub(1), a.sub(2), a.sub(3)), lo=lo),
                    Item(cvtpk(a.sub(2), b.sub(0), b.sub(1), exp=[(b, f"G{sg}.7")]), lo=lo), Item(cvtpk(a.sub(3), b.sub(2), b.sub(3)), lo=lo)]
        for qt in range(5):
            a = acc(2 * mp, qt)
            its += [Item(swap16(a.sub(0), a.sub(2))), Item(swap16(a.sub(1), a.sub(3)))]
        for qt in range(5):
            a = acc(2 * mp, qt)
            its += [Item(salu("s_mov_b32", sOffB, "0x%x" % (((8 * sg + mp) * 5 + qt) * 1024))),
                    Item(vst("buffer_store_dwordx4", a, voffP, srdWS, sOffB, 0, flags=cfg.st_flags, tag=f"ST{sg}{mp}"))]
        return its
    oq = outq(0, 0) + outq(0, 1) + outq(1, 0)
    p += [bread(0, qt) for qt in range(5)] + flat(head)
    p += weave(mf, [rq, bq, dq, oq], reserve=reserve)
    p += stamp("stage4 done")
    p += flat(outq(1, 1))
    return p

def epilogue():
    p = []
    if cfg.stamps:
        p += [wait(vm=0)] + stamp("stores done")
        n = len(stamp_names)
        p.append(raw(f"s_memrealtime s[{sStamp}:{sStamp+1}]", 'smem')); p.append(raw("s_waitcnt lgkmcnt(0)"))
        p.append(raw(f"v_writelane_b32 {vX3}, s{sStamp}, 31", 'valu'))
        p.append(raw(f"v_writelane_b32 {vX3}, s{sStamp+2}, 30", 'valu'))
        p.append(raw(f"v_writelane_b32 {vX3}, s{sStamp+4}, 29", 'valu'))
        p.append(raw(f"s_getreg_b32 s{sStamp}, hwreg(HW_REG_XCC_ID)")); p.append(raw(f"v_writelane_b32 {vX3}, s{sStamp}, 28", 'valu'))
        p.append(salu("s_lshl_b32", sTmp[0], "s2", 2)); p.append(salu("s_add_u32", sTmp[0], sTmp[0], sW)); p.append(salu("s_lshl_b32", sTmp[0], sTmp[0], 8))
        p.append(valu("v_lshlrev_b32", vT[0], 2, vL))
        p.append(vst("buffer_store_dword", vX3, vT[0], srdST, sTmp[0], 0))
    p.append(label("L_exit")); p.append(raw("s_endpgm", 'branch')); p.append(label("L_code_end"))
    return p

REDUCE = """
.globl reduce_kernel
.p2align 8
.type reduce_kernel,@function
reduce_kernel:
    s_cmp_ge_u32 s2, 0x100
    s_cbranch_scc1 L_rexit
    s_load_dwordx2 s[4:5], s[0:1], 0x60
    s_load_dwordx2 s[8:9], s[0:1], 0x50
    s_lshr_b32 s12, s2, 4               ; br*8+b
    s_and_b32 s13, s2, 15               ; column group
    s_mul_i32 s14, s12, 0x140000        ; *16*81920
    s_mul_i32 s15, s13, 5120
    v_lshlrev_b32 v1, 4, v0             ; qt*1024 + lane*16
    v_add_u32 v1, s15, v1
    s_waitcnt lgkmcnt(0)
    s_add_u32 s4, s4, s14
    s_addc_u32 s5, s5, 0
    s_mov_b32 s6, 0x140000
    s_mov_b32 s7, 0x20000
    s_mov_b32 s10, 0x140000
    s_mov_b32 s11, 0x20000
    s_mov_b32 s16, 0
""" + "".join(f"    buffer_load_dwordx4 v[{16+4*h}:{19+4*h}], v1, s[4:7], s16 offen\n    s_add_u32 s16, s16, 81920\n" for h in range(16)) + """
    ; output address: ((b*80 + 16*qt + n)*1024 + br*512 + 32*np + 8*kappa)*2
    s_and_b32 s17, s12, 7
    s_lshr_b32 s18, s12, 3
    s_mul_i32 s17, s17, 163840
    s_lshl_b32 s18, s18, 10
    s_lshl_b32 s19, s13, 6
    s_add_u32 s17, s17, s18
    s_add_u32 s17, s17, s19
    v_lshrrev_b32 v2, 6, v0
    v_and_b32 v3, 15, v0
    v_lshl_add_u32 v2, v2, 4, v3
    v_lshlrev_b32 v2, 11, v2
    v_bfe_u32 v3, v0, 4, 1
    v_lshl_add_u32 v2, v3, 5, v2
    v_bfe_u32 v3, v0, 5, 1
    v_lshl_add_u32 v2, v3, 4, v2
    s_mov_b32 s20, 0xffff0000
""" + "".join(f"    v_mov_b32 v{8+i}, 0\n" for i in range(8)) + "".join(
    f"    s_waitcnt vmcnt({15-h})\n" + "".join(
        f"    v_lshlrev_b32 v4, 16, v{16+4*h+i}\n    v_and_b32 v5, s20, v{16+4*h+i}\n    v_add_f32 v{8+2*i}, v{8+2*i}, v4\n    v_add_f32 v{9+2*i}, v{9+2*i}, v5\n" for i in range(4))
    for h in range(16)) + """
    v_cvt_pk_bf16_f32 v4, v8, v9
    v_cvt_pk_bf16_f32 v5, v10, v11
    v_cvt_pk_bf16_f32 v6, v12, v13
    v_cvt_pk_bf16_f32 v7, v14, v15
    buffer_store_dwordx4 v[4:7], v2, s[8:11], s17 offen
L_rexit:
    s_endpgm
"""

def build():
    prog = []
    if cfg.stamps:
        prog += [raw(f"s_memrealtime s[{sStamp+2}:{sStamp+3}]", 'smem'), raw(f"s_memtime s[{sStamp+4}:{sStamp+5}]", 'smem')]
    prog += prologue() + stamp("prologue issued") + stage1() + trans1() + attention() + trans2() + stage4() + epilogue()
    prog = resolve_waits(prog)
    prog, nn = fix_hazards(prog, verbose='-v' in sys.argv)
    check_tags(prog); check_lds(prog)
    est = estimate(prog)
    prev = 0; pm = 0
    for name, t, nm in est:
        print(f"  est {name:24s} t={t:6d} (+{t-prev:5d}, mfma +{nm-pm} = {16*(nm-pm)})", file=sys.stderr); prev = t; pm = nm
    print(f"  instrs {sum(1 for x in prog if x.kind!='label')}, hazard nops {nn}", file=sys.stderr)
    print("  slots", KV_SLOT, WO_SLOT, EX_SLOT, MISC, file=sys.stderr)
    head = open(f"cdna_kernels/{NAME}.s.ref").read().split("; Override launch")[0]
    s = head
    s += f"; @launch kernel={NAME}_kernel grid=(256,1,1) block=(256,1,1) lds=163840\n"
    s += f"; @launch kernel=reduce_kernel grid=(256,1,1) block=(320,1,1) lds=0\n"
    s += f'.amdgcn_target "amdgcn-amd-amdhsa--gfx950"\n.text\n.globl {NAME}_kernel\n.p2align 8\n.type {NAME}_kernel,@function\n{NAME}_kernel:\n'
    for x in prog:
        s += (x.text if x.kind == 'label' else "    " + x.text) + "\n"
    s += REDUCE
    def kd(n, vg, acc):
        return f""".amdhsa_kernel {n}
  .amdhsa_next_free_vgpr {vg}
  .amdhsa_next_free_sgpr 102
  .amdhsa_accum_offset {acc}
  .amdhsa_group_segment_fixed_size 0
  .amdhsa_kernarg_size 104
  .amdhsa_user_sgpr_count 2
  .amdhsa_user_sgpr_kernarg_segment_ptr 1
  .amdhsa_system_sgpr_workgroup_id_x 1
.end_amdhsa_kernel
"""
    s += '.section .rodata,"a"\n.p2align 6\n' + kd(NAME + "_kernel", 512, 256) + ".p2align 6\n" + kd("reduce_kernel", 80, 80)
    return s

if __name__ == "__main__":
    out = f"cdna_kernels/{NAME}.s"
    for a in sys.argv[1:]:
        if a == '--stamps': cfg.stamps = True
        elif a.startswith('--out='): out = a[6:]
        elif a.startswith('--') and '=' in a:
            k, v = a[2:].split('=', 1)
            setattr(cfg, k, type(getattr(cfg, k))(v))
    s = build()
    open(out, "w").write(s)
    if cfg.stamps: open(out + ".stamps", "w").write("\n".join(stamp_names))
```

```python
import sys, re
def diag(mode, ie, is_):
    s = """.globl diag_kernel
.p2align 8
.type diag_kernel,@function
diag_kernel:
    s_cmp_ge_u32 s2, 1
    s_cbranch_scc1 L_dexit
    s_memrealtime s[20:21]
    s_load_dwordx2 s[4:5], s[0:1], 0x60
    s_waitcnt lgkmcnt(0)
    s_add_u32 s4, s4, 0x4000000
    s_addc_u32 s5, s5, 0
    s_mov_b32 s6, 0x100000
    s_mov_b32 s7, 0x20000
    v_lshlrev_b32 v1, 12, v0
"""
    for k in range(4):
        s += f"    buffer_load_dword v{2+k}, v1, s[4:7], 0 offen offset:{k*1024+ie*4}\n    buffer_load_dword v{6+k}, v1, s[4:7], 0 offen offset:{k*1024+is_*4}\n"
    s += "    s_waitcnt vmcnt(0)\n"
    if mode == 'avg':
        s += "".join(f"    v_sub_u32 v{2+k}, v{2+k}, v{6+k}\n" for k in range(4))
        s += "    v_add_u32 v2, v2, v3\n    v_add_u32 v4, v4, v5\n    v_add_u32 v2, v2, v4\n    s_mov_b32 s8, 0\n    s_nop 1\n"
        for l in range(64): s += f"    v_readlane_b32 s9, v2, {l}\n    s_nop 1\n    s_add_u32 s8, s8, s9\n"
        s += "    s_lshr_b32 s8, s8, 8\n"
    else:
        s += "    v_max_u32 v2, v2, v3\n    v_max_u32 v4, v4, v5\n    v_max_u32 v2, v2, v4\n    v_min_u32 v6, v6, v7\n    v_min_u32 v8, v8, v9\n    v_min_u32 v6, v6, v8\n    s_mov_b32 s8, 0\n    s_mov_b32 s10, -1\n    s_nop 1\n"
        for l in range(64): s += f"    v_readlane_b32 s9, v2, {l}\n    v_readlane_b32 s11, v6, {l}\n    s_nop 1\n    s_max_u32 s8, s8, s9\n    s_min_u32 s10, s10, s11\n"
        if mode == 'now': s += "    s_mov_b32 s8, s20\n"
        s += "    s_sub_u32 s8, s8, s10\n    s_mul_i32 s8, s8, 10\n"
    if mode == 'mspan': s = s.replace('v_max_u32', 'v_min_u32').replace('s_max_u32 s8', 's_min_u32 s8').replace('s_mov_b32 s8, 0', 's_mov_b32 s8, -1')
    if mode == 'zero': s += "    s_mov_b32 s8, 0\n"
    s += """    s_min_u32 s8, s8, 200000
    s_memrealtime s[12:13]
    s_waitcnt lgkmcnt(0)
L_spin:
    s_memrealtime s[14:15]
    s_waitcnt lgkmcnt(0)
    s_sub_u32 s16, s14, s12
    s_cmp_lt_u32 s16, s8
    s_cbranch_scc1 L_spin
L_dexit:
    s_endpgm
"""
    return s
def make(src, dst, mode, ie, is_):
    s = open(src).read()
    lines = [m for m in re.finditer(r"; @launch [^\n]*\n", s)]
    N = "concat_heads__gqa_block_cached__gqa_block_cached__near_ridge_kernel"
    if "kernel=" not in lines[0].group(0):
        s = s.replace("; @launch grid", f"; @launch kernel={N} grid"); lines = [m for m in re.finditer(r"; @launch [^\n]*\n", s)]
    e = lines[-1].end()
    s = s[:e] + "; @launch kernel=diag_kernel grid=(1,1,1) block=(64,1,1) lds=0\n" + s[e:]
    s = s.replace('.section .rodata,"a"', diag(mode, ie, is_) + '.section .rodata,"a"')
    s += """.p2align 6
.amdhsa_kernel diag_kernel
  .amdhsa_next_free_vgpr 16
  .amdhsa_next_free_sgpr 32
  .amdhsa_accum_offset 16
  .amdhsa_group_segment_fixed_size 0
  .amdhsa_kernarg_size 104
  .amdhsa_user_sgpr_count 2
  .amdhsa_user_sgpr_kernarg_segment_ptr 1
  .amdhsa_system_sgpr_workgroup_id_x 1
.end_amdhsa_kernel
"""
    open(dst, "w").write(s)
if __name__ == "__main__":
    src = sys.argv[1]
    for spec in sys.argv[2:]:
        mode, ie, is_ = spec.split(":")
        make(src, src.replace(".s", f"_{mode}_{ie}_{is_}.s"), mode, int(ie), int(is_))
```
